```python
import torch

def _softmax(x, axis=-1):
    return torch.softmax(x, dim=axis)
def _gelu(x):
    return torch.nn.functional.gelu(x, approximate="tanh")
def _silu(x):
    return torch.nn.functional.silu(x)
def _sigmoid(x):
    return torch.sigmoid(x)
def _layernorm(x, axis=-1, eps=1e-5):
    m = x.mean(dim=axis, keepdim=True)
    v = x.var(dim=axis, keepdim=True, unbiased=False)
    return (x - m) / torch.sqrt(v + eps)
def _scatter_add(tgt, idx, src, axis=0):
    return tgt.clone().index_add_(axis, idx, src)
def _segment_sum(src, seg, n):
    out = torch.zeros((n,) + src.shape[1:], dtype=src.dtype)
    return out.index_add_(0, seg, src)
def _pad(x, pw):
    flat = tuple(v for pair in reversed(pw) for v in pair)
    return torch.nn.functional.pad(x, flat)

kernel_name = 'standalone__modern_conv_block_slak__vision'

def setup_inputs():

    _w = (lambda a: (lambda t: t.to(torch.bfloat16) if t.is_floating_point() else t)(torch.as_tensor(a)))
    H = W = 224
    C = 96
    K = 3
    return {
        "x": _w((lambda *s: torch.randn(*s, dtype=torch.bfloat16) * 0.05)(1, H, W, C)),
        "dw": _w((lambda *s: torch.randn(*s, dtype=torch.bfloat16) * 0.05)(K, K, C)),
        "w1": _w((lambda *s: torch.randn(*s, dtype=torch.bfloat16) * 0.05)(C, 4 * C)),
        "w2": _w((lambda *s: torch.randn(*s, dtype=torch.bfloat16) * 0.05)(4 * C, C)),
        "grn_g": _w((lambda *s: torch.randn(*s, dtype=torch.bfloat16) * 0.05)(4 * C)),
        "grn_b": _w((lambda *s: torch.randn(*s, dtype=torch.bfloat16) * 0.05)(4 * C)),
    }

def reference(x, dw, w1, w2, grn_g, grn_b):
    B, H, W, C = x.shape
    K = dw.shape[0]
    pad = K // 2
    xp = _pad(x, ((0,0),(pad,pad),(pad,pad),(0,0)))
    out = torch.zeros_like(x)
    for i in range(K):
        for j in range(K):
            out = out + xp[:, i:i+H, j:j+W, :] * dw[i, j][None, None, None, :]
    h = _layernorm(out, axis=-1)
    h = _gelu(h @ w1)
    gx = torch.sqrt((h * h).sum(axis=(1, 2), keepdims=True) + 1e-6)
    nx = gx / (gx.mean(axis=-1, keepdims=True) + 1e-6)
    h = grn_g[None, None, None, :] * (h * nx) + grn_b[None, None, None, :] + h
    return x + h @ w2
```

```python
import re

REG_RE = re.compile(r"\b([vas])(?:(\d+)|\[(\d+):(\d+)\])")
TRANS = ("v_exp_f32", "v_rcp_f32", "v_rsq_f32", "v_sqrt_f32", "v_log_f32")


def regs_of(tok):
    out = set()
    for m in REG_RE.finditer(tok):
        k = m.group(1)
        if m.group(2) is not None:
            out.add((k, int(m.group(2))))
        else:
            out.update((k, i) for i in range(int(m.group(3)), int(m.group(4)) + 1))
    if re.search(r"\bvcc\b", tok):
        out.add(("s", "vcc"))
    if re.search(r"\bm0\b", tok):
        out.add(("s", "m0"))
    if re.search(r"\bexec(_lo|_hi)?\b", tok):
        out.add(("s", "exec"))
    return out


def split_ops(s):
    out, depth, cur = [], 0, ""
    for ch in s:
        if ch in "[(":
            depth += 1
        if ch in "])":
            depth -= 1
        if ch == "," and depth == 0:
            out.append(cur.strip())
            cur = ""
        else:
            cur += ch
    if cur.strip():
        out.append(cur.strip())
    return out


class Ins:
    def __init__(self, text):
        self.text = text
        parts = text.split(None, 1)
        self.op = op = parts[0]
        ops = split_ops(parts[1]) if len(parts) > 1 else []
        if ops:
            last = ops[-1].split()
            mods = " ".join(last[1:])
            ops[-1] = last[0] if last else ""
        else:
            mods = ""
        self.ops, self.mods = ops, mods
        self.mfma = op.startswith("v_mfma") or op.startswith("v_smfmac")
        self.valu = op.startswith("v_") and not self.mfma
        self.salu = op.startswith("s_")
        self.ds = op.startswith("ds_")
        self.vmem = op.startswith("buffer_") or op.startswith("global_")
        self.smem = op.startswith("s_load") or op in ("s_memtime", "s_memrealtime")
        self.trans = op.replace("_e32", "").replace("_e64", "") in TRANS
        self.dpp = "_dpp" in op or "row_" in mods or "quad_perm" in mods
        self.permlane = op.startswith("v_permlane")
        self.dma = self.vmem and "lds" in mods.split()
        R = [regs_of(o) for o in ops]
        w, r = set(), set()
        self.srcc = set()
        self.store_data = set()
        if self.mfma:
            w = R[0]
            r = R[1] | R[2] | R[3]
            self.srcab = R[1] | R[2]
            self.srcc = R[3]
            if op.startswith("v_smfmac"):
                self.srcab = R[1] | R[2] | R[3]
                self.srcc = R[0]
                r |= R[0]
            self.passes = 8 if "32x32" in op else 4
        elif self.valu:
            w = set(R[0])
            r = set().union(*R[1:]) if len(R) > 1 else set()
            if self.permlane:
                w |= R[1]
                r |= R[0]
            if op.startswith("v_fmac") or self.dpp or "d16" in op:
                r |= R[0]
            if op.startswith("v_cndmask") and len(ops) == 3:
                r.add(("s", "vcc"))
        elif self.ds:
            if op.startswith("ds_read"):
                w, r = R[0], R[1]
            else:
                r = set().union(*R)
        elif self.vmem:
            if self.dma:
                r = set().union(*R) | {("s", "m0")}
            elif "load" in op:
                w, r = R[0], set().union(*R[1:])
            else:
                r = set().union(*R)
                if "atomic" in op and "sc0" in mods.split():
                    w = R[0]
                if len(R[0]) >= 3:
                    self.store_data = R[0]
        elif self.salu:
            if op.startswith(("s_cmp", "s_waitcnt", "s_nop", "s_barrier", "s_cbranch", "s_branch", "s_sleep", "s_setprio", "s_endpgm")):
                r = set().union(*R) if R else set()
            else:
                w = R[0]
                r = set().union(*R[1:]) if len(R) > 1 else set()
                if "saveexec" in op:
                    w = w | {("s", "exec")}
        self.w, self.r = w, r
        self.states = int(ops[0]) + 1 if op == "s_nop" else 1


def vec(s):
    return {x for x in s if x[0] in "va"}


def sca(s):
    return {x for x in s if x[0] == "s"}


def need_states(p, c):
    n = 0
    if p.valu:
        pw = vec(p.w)
        if c.mfma and pw & c.r:
            n = max(n, 2)
        if (c.dpp or c.permlane) and pw & c.r:
            n = max(n, 2)
        if c.op.startswith(("v_readfirstlane", "v_readlane")) and pw & c.r:
            n = max(n, 1)
        if p.trans and c.valu and not c.trans and pw & c.r:
            n = max(n, 1)
        ps = sca(p.w)
        if ps and c.vmem and ps & c.r:
            n = max(n, 5)
        if ps and c.valu and ps & c.r:
            n = max(n, 2)
    if p.mfma:
        big = p.passes == 8
        if c.mfma:
            if p.w & c.srcab:
                n = max(n, 12 if big else 8)
            if p.w & c.srcc and not (p.w == c.srcc and p.passes == c.passes):
                n = max(n, 10 if big else 6)
            if p.w & c.w and not (p.w & c.srcc):
                n = max(n, 10 if big else 6)
        elif (c.valu or c.ds or c.vmem) and p.w & (c.r | c.w):
            n = max(n, 12 if big else 8)
        if c.valu and vec(p.srcc) & c.w:
            n = max(n, 7 if big else 3)
    if p.salu and ("s", "m0") in p.w and c.dma:
        n = max(n, 1)
    if p.store_data and p.store_data & c.w:
        n = max(n, 2)
    return n


class Prog:
    def __init__(self):
        self.lines = []
        self.hist = []
        self.t = 0
        self.lgkm = []
        self.vm = []
        self.nops = 0
        self.smem_pending = False
        self.uncounted = 0

    def raw(self, text):
        self.lines.append(text)

    def comment(self, text):
        self.lines.append("    ; " + text)

    def _push(self, ins):
        self.lines.append("    " + ins.text)
        self.hist.append((ins, self.t))
        self.t += ins.states
        if len(self.hist) > 40:
            self.hist.pop(0)

    def _wait(self, vm=None, lgkm=None):
        parts = []
        if vm is not None:
            vm = min(vm, 63)
            del self.vm[: max(0, len(self.vm) - vm)]
            parts.append(f"vmcnt({vm})")
        if lgkm is not None:
            lgkm = min(lgkm, 15)
            del self.lgkm[: max(0, len(self.lgkm) - lgkm)]
            if lgkm == 0:
                self.smem_pending = False
            parts.append(f"lgkmcnt({lgkm})")
        self._push(Ins("s_waitcnt " + " ".join(parts)))

    def wait(self, vm=None, lgkm=None):
        self._wait(vm, lgkm)

    def wait_tag(self, tag):
        idx = max((i for i, e in enumerate(self.vm) if tag in e), default=None)
        if idx is not None:
            self._wait(vm=len(self.vm) - idx - 1)

    def e(self, text, tag=None):
        for line in text.strip().split("\n"):
            line = line.strip()
            if line:
                self._e(line, tag)

    def _e(self, text, tag):
        ins = Ins(text)
        touched = ins.r | ins.w
        vm = lg = None
        idx = max((i for i, e in enumerate(self.vm) if e & touched), default=None)
        if idx is not None:
            vm = len(self.vm) - idx - 1
        idx = max((i for i, e in enumerate(self.lgkm) if e & touched), default=None)
        if idx is not None:
            lg = 0 if self.smem_pending else len(self.lgkm) - idx - 1
        if vm is not None or lg is not None:
            self._wait(vm, lg)
        short = 0
        for p, tp in self.hist:
            need = need_states(p, ins)
            if need:
                short = max(short, need - (self.t - tp - p.states))
        while short > 0:
            k = min(short, 16)
            self._push(Ins(f"s_nop {k - 1}"))
            self.nops += k
            short -= k
        self._push(ins)
        if self.uncounted:
            assert not (ins.ds or ins.smem), "LDS/SMEM op inside an uncounted block"
            if ins.vmem and ins.w:
                self.vm_block.append(set(ins.w))
            return
        if ins.ds or ins.smem:
            self.lgkm.append(set(ins.w))
            if ins.smem:
                self.smem_pending = True
        if ins.vmem:
            self.vm.append(set(ins.w) | ({tag} if tag else set()))

    def barrier(self, vm=None):
        if self.lgkm or vm is not None:
            self._wait(vm, 0 if self.lgkm else None)
        self._push(Ins("s_barrier"))

    def skip_begin(self, branch):
        self.e(branch)
        self.saved = (list(self.hist), self.t, [set(x) for x in self.vm], [set(x) for x in self.lgkm], self.smem_pending)
        return self.saved

    def skip_end(self, label, saved):
        hist, t0, vm, lgkm, smem = saved
        dt = self.t - t0
        old = {id(p) for p, _ in hist}
        self.hist = [(p, tp + dt) for p, tp in hist] + [(p, tp) for p, tp in self.hist if id(p) not in old]
        self.hist.sort(key=lambda x: x[1])
        self.vm, self.lgkm, self.smem_pending = vm, lgkm, smem
        self.raw(label + ":")

    def snapshot(self):
        return (list(self.hist), self.t, [set(x) for x in self.vm], [set(x) for x in self.lgkm], self.smem_pending)

    def restore(self, snap):
        hist, t, vm, lgkm, smem = snap
        self.hist, self.t = list(hist), t
        self.vm, self.lgkm, self.smem_pending = [set(x) for x in vm], [set(x) for x in lgkm], smem

    def text(self):
        return "\n".join(self.lines) + "\n"
```

```python
import math
import struct
import sys

from asmlib import Prog

KNAME = "standalone__modern_conv_block_slak__vision_kernel"


def f2u(x):
    return struct.unpack("<I", struct.pack("<f", x))[0]


C0 = 2.0 * math.sqrt(2.0 / math.pi) * math.log2(math.e)
C1 = C0 * 0.044715
KS = C1 ** (1.0 / 3.0)
C0P = C0 / KS

W1R = 49152
SP = 122880
MISC = 159744
SUMS, GX, MEAN, BIAS = MISC, MISC + 2048, MISC + 3584, MISC + 3648
SMALL = 6144 + 9 * 12288
LDS_BYTES = 163840


def slot(n):
    return 6144 + 12288 * n


G = 16
GATE = 65536
OOB = 0x7F000000

XD, XS, DW, W1, W2, GG, BB, OUT, DBG, WS = 4, 8, 12, 16, 20, 24, 28, 32, 36, 40
sW, sG, sR, sC = 44, 45, 46, 47
sC0, sKI = 60, 62
sMASK, sONE_LO, sONE_HI, sREP, sPX, sHB2 = 64, 65, 66, 67, 68, 69
sJT = (70, 71, 72)
sB0, sB1, sSPIN = 73, 74, 75
sSTAMP = 76


def srd(n):
    return f"s[{n}:{n + 3}]"


def vr(a, n=1):
    return f"v{a}" if n == 1 else f"v[{a}:{a + n - 1}]"


def ar(a, n=1):
    return f"a{a}" if n == 1 else f"a[{a}:{a + n - 1}]"


PX0, PX1, L16, L4, LSP, HW0, HW1, SUMA, HS, W2V, GBV, TMP = range(12)
ACC = 12
D0, D1, T = 18, 34, 50
LX, LY = 64, 76
W2O, XO, GRAW, BRAW = 88, 124, 148, 154
W2E, XE = 18, 54
SREG = (78, 82, 12)


class Gen:
    def __init__(self, opt):
        self.o = opt
        self.p = Prog()
        self.nst = 0

    def stamp(self, i):
        if self.o.get("stamps"):
            self.p.e(f"s_memtime s[{sSTAMP + 2 * i}:{sSTAMP + 2 * i + 1}]")

    def prologue(self):
        p, o = self.p, self.o
        if o.get("stamps"):
            p.e("s_memrealtime s[98:99]")
        self.stamp(0)
        p.e("s_cmp_ge_u32 s2, 256\ns_cbranch_scc1 L_exit")
        for reg, off in ((DW, 8), (XD, 0), (W1, 16), (XS, 0), (W2, 24), (GG, 32), (BB, 40), (OUT, 48), (DBG, 56), (WS, 64)):
            p.raw(f"    s_load_dwordx2 s[{reg}:{reg + 1}], s[0:1], {off}")
        p.e(f"""
            v_lshrrev_b32 v12, 6, v0
            v_and_b32 v{TMP}, 63, v0
            s_and_b32 s48, s2, 7
            v_readfirstlane_b32 s{sW}, v12
            s_lshr_b32 s49, s2, 3
            s_lshr_b32 s50, s48, 1
            s_lshl_b32 s50, s50, 2
            s_lshr_b32 s51, s49, 3
            s_add_u32 s50, s50, s51
            s_and_b32 s51, s48, 1
            s_lshl_b32 s51, s51, 3
            s_and_b32 s52, s49, 7
            s_add_u32 s51, s51, s52
            s_mul_i32 s{sR}, s50, 14
            s_mul_i32 s{sC}, s51, 14
            s_mul_i32 s{sPX}, s{sR}, 224
            s_add_u32 s{sPX}, s{sPX}, s{sC}
            s_mul_i32 s{sPX}, s{sPX}, 192
            s_sub_u32 s{sR}, s{sR}, 1
            s_sub_u32 s{sC}, s{sC}, 1
            s_and_b32 s{sREP}, s49, 15
            v_mul_u32_u24 v76, 683, v0
            v_lshrrev_b32 v76, 16, v76
            v_mul_u32_u24 v77, 96, v76
            v_sub_u32 v77, v0, v77
            v_mul_u32_u24 v78, 288, v76
            v_add_lshl_u32 v78, v78, v77, 1
            v_mov_b32 v84, {OOB}
        """)
        for j in range(3):
            p.e(f"""
                v_add_u32 v15, {64 * j}, v{TMP}
                v_mul_u32_u24 v16, 171, v15
                v_lshrrev_b32 v16, 11, v16
                v_mul_u32_u24 v17, 12, v16
                v_sub_u32 v17, v15, v17
                v_bfe_u32 v15, v16, 2, 2
                v_xor_b32 v17, v17, v15
                v_add_u32 v16, s{sC}, v16
                v_cmp_gt_u32 vcc, 224, v16
                v_mul_u32_u24 v16, 192, v16
                v_lshl_add_u32 v16, v17, 4, v16
                v_cndmask_b32 v{12 + j}, v84, v16, vcc
            """)
        for reg, size in ((DW, 1728), (XD, 9633792), (W1, 73728), (XS, 9633792), (W2, 73728), (GG, 768), (BB, 768), (OUT, 9633792), (DBG, 256), (WS, 1 << 28)):
            p.e(f"s_mov_b32 s{reg + 2}, {size}\ns_mov_b32 s{reg + 3}, 0x20000")
        p.e(f"s_and_b32 s{sG}, s{sW}, 3")
        p.wait(lgkm=0)
        for dx in range(3):
            p.e(f"buffer_load_ushort v{80 + dx}, v78, {srd(DW)}, 0 offen offset:{192 * dx}")
        pol = o.get("xpol", "")
        for add in (0, 8):
            p.e(f"""
                s_add_u32 s48, s{sW}, {add}
                s_add_u32 s49, s48, s{sR}
                s_mul_i32 s50, s49, 43008
                s_cmp_lt_u32 s49, 224
                s_cselect_b32 s50, s50, 0
                s_cselect_b32 s{XD + 2}, 9633792, 0
                s_mul_i32 s51, s48, 3072
            """)
            for j in range(3):
                p.e(f"s_add_u32 m0, s51, {1024 * j}")
                p.e(f"buffer_load_dwordx4 v{12 + j}, {srd(XD)}, s50 offen {pol} lds", tag="x")
        for b in range(3):
            p.e(f"""
                v_add_u32 v85, {64 * b}, v{TMP}
                v_mul_u32_u24 v86, 171, v85
                v_lshrrev_b32 v86, 13, v86
                v_mul_u32_u24 v87, 48, v86
                v_sub_u32 v87, v85, v87
                v_lshlrev_b32 v85, 2, v86
                v_xor_b32 v87, v87, v85
                v_mul_u32_u24 v86, 768, v86
                v_lshl_add_u32 v{15 + b}, v87, 4, v86
            """)
        p.e(f"s_mul_i32 s48, s{sW}, 9216")
        for i in range(9):
            a, b = divmod(i, 3)
            if b == 0:
                p.e(f"s_add_u32 s49, s48, {3072 * a}")
            p.e(f"s_add_u32 m0, s48, {W1R + 1024 * i}")
            p.e(f"buffer_load_dwordx4 v{15 + b}, {srd(W1)}, s49 offen lds", tag="w1")
        p.e(f"""
            v_lshlrev_b32 v{L16}, 4, v{TMP}
            v_lshlrev_b32 v{L4}, 2, v{TMP}
            v_mov_b32 v84, 0
            v_mov_b32 v85, 0
            v_mov_b32 v86, 0
            v_mov_b32 v87, 0
            s_mul_i32 s48, s{sW}, 3072
            s_add_u32 s48, s48, {SP}
            v_add_u32 v12, s48, v{L16}
            v_lshlrev_b32 v13, 3, v0
            v_add_u32 v13, {MISC}, v13
            ds_write_b128 v12, v[84:87]
            ds_write_b128 v12, v[84:87] offset:1024
            ds_write_b128 v12, v[84:87] offset:2048
            ds_write_b64 v13, v[84:85]
            v_add_u32 v{LSP}, {SP}, v{L16}
        """)
        p.e(f"""
            v_lshrrev_b32 v14, 4, v77
            v_mad_u32_u24 v14, v76, 6, v14
            v_and_b32 v15, 15, v77
            v_lshrrev_b32 v16, 3, v15
            v_lshl_add_u32 v16, v16, 5, v15
            v_lshlrev_b32 v16, 4, v16
            v_lshl_add_u32 v16, v14, 10, v16
            v_and_b32 v15, 4, v15
            v_add_u32 v16, v16, v15
            v_add_u32 v79, {SP}, v16
        """)
        p.barrier()
        self.stamp(1)
        self.addresses()
        p.e("ds_write_b16 v79, v80\nds_write_b16 v79, v81 offset:8\nds_write_b16 v79, v82 offset:256")
        p.barrier()
        for f in range(18):
            p.e(f"ds_read_b128 {ar(4 * f, 4)}, v{LSP} offset:{1024 * f}")
        for i in range(48):
            p.e(f"v_mov_b32 v{18 + i}, 0")
        p.wait_tag("x")
        p.barrier()
        self.stamp(2)

    def addresses(self):
        p = self.p
        lane = TMP
        p.e(f"""
            s_mov_b32 s{sC0}, {f2u(C0P)}
            s_mov_b32 s{sC0 + 1}, {f2u(C0P)}
            s_mov_b32 s{sKI}, {f2u(1.0 / KS)}
            s_mov_b32 s{sKI + 1}, {f2u(1.0 / KS)}
            s_mov_b32 s{sMASK}, 0xffff0000
            s_mov_b32 s{sONE_LO}, 0x00003f80
            s_mov_b32 s{sONE_HI}, 0x3f800000
            s_lshr_b32 s48, s{sW}, 1
            s_mul_i32 s48, s48, 96
            s_and_b32 s49, s{sW}, 1
            s_lshl_b32 s49, s49, 4
            s_add_u32 s48, s48, s49
            s_lshl_b32 s{sHB2}, s48, 1
            s_mul_i32 s{sJT[0]}, s48, 192
            s_add_u32 s{sJT[1]}, s{sJT[0]}, 6144
            s_add_u32 s{sJT[2]}, s{sJT[0]}, 12288
            v_and_b32 v12, 15, v{lane}
            v_lshrrev_b32 v13, 4, v{lane}
            v_min_u32 v14, 2, v13
            v_add_u32 v14, v14, v12
            v_bfe_u32 v15, v14, 2, 2
            v_mul_u32_u24 v14, 192, v14
            s_mul_i32 s48, s{sW}, 6144
            v_add_u32 v14, s48, v14
        """)
        for b in range(4):
            p.e(f"v_xor_b32 v16, {b}, v15\nv_lshl_add_u32 v{66 + b}, v16, 4, v14")
        p.e(f"""
            v_and_b32 v16, 3, v12
            v_mul_u32_u24 v70, 0x1111, v16
            v_lshrrev_b32 v17, 2, v12
            v_lshl_add_u32 v16, v17, 3, v16
            v_lshlrev_b32 v16, 4, v16
            v_lshl_add_u32 v16, v13, 9, v16
            s_add_u32 s48, s48, {SP - 6144}
            s_cmp_eq_u32 s{sW}, 0
            s_cselect_b32 s48, 0, s48
            v_add_u32 v71, s48, v16
            v_mul_u32_u24 v{W2V}, 768, v13
            v_lshl_add_u32 v{W2V}, v12, 2, v{W2V}
            v_lshlrev_b32 v{GBV}, 3, v13
        """)
        p.e(f"""
            v_lshrrev_b32 v14, 5, v{lane}
            v_lshl_add_u32 v15, v14, 2, v17
            v_mul_u32_u24 v15, 768, v15
            v_and_b32 v16, 1, v{lane}
            v_lshl_add_u32 v15, v16, 3, v15
            v_add_u32 v15, {W1R}, v15
            v_and_b32 v16, 1, v13
            v_lshlrev_b32 v16, 1, v16
            v_bfe_u32 v75, v{lane}, 1, 1
            v_add_u32 v16, v16, v75
            s_mul_i32 s48, s{sG}, 12
            v_add_u32 v16, s48, v16
            v_lshlrev_b32 v17, 2, v17
        """)
        for jt in range(3):
            p.e(f"v_add_u32 v75, {4 * jt}, v16\nv_xor_b32 v75, v75, v17\nv_lshl_add_u32 v{72 + jt}, v75, 4, v15")
        p.e(f"""
            v_and_b32 v15, 31, v{lane}
            s_mul_i32 s48, s{sG}, 96
            v_add_u32 v16, s48, v15
            v_bfe_u32 v17, v15, 2, 1
            v_xor_b32 v17, v17, v14
            v_lshlrev_b32 v17, 4, v17
            v_lshl_add_u32 v{HW0}, v16, 5, v17
            v_add_u32 v{HW1}, 61440, v{HW0}
            v_lshlrev_b32 v17, 2, v14
            v_lshl_add_u32 v17, v16, 3, v17
            v_add_u32 v{HS}, {SMALL}, v17
            s_lshl_b32 s48, s{sG}, 9
            s_add_u32 s48, s48, {SUMS}
            v_lshlrev_b32 v15, 4, v15
            v_add_u32 v{SUMA}, s48, v15
        """)
        p.e(f"""
            s_mul_i32 s48, s{sG}, 12288
            s_add_u32 s{sB0}, s48, {slot(0)}
            s_add_u32 s{sB1}, s48, {slot(4)}
            s_cmp_eq_u32 s{sG}, 2
            s_cselect_b32 s{sB1}, {SP}, s{sB1}
            s_cmp_eq_u32 s{sG}, 3
            s_cselect_b32 s{sB1}, {slot(8)}, s{sB1}
            s_cselect_b32 s53, 43, 0
            s_cselect_b32 s54, 8, 0
            s_lshl_b32 s55, s{sG}, 1
            s_add_u32 s55, s55, 8
            s_cmp_eq_u32 s{sG}, 3
            s_cselect_b32 s55, 2, s55
            s_mov_b32 s52, 0
            s_cmp_lt_u32 s{sW}, 4
        """)
        sv = p.skip_begin("s_cbranch_scc1 L_blk_a")
        p.e(f"""
            s_add_u32 s{sB1}, s48, {slot(6)}
            s_add_u32 s49, s48, {SP - 12288}
            s_cmp_ge_u32 s{sG}, 2
            s_cselect_b32 s{sB1}, s49, s{sB1}
            s_lshl_b32 s52, s{sG}, 3
            s_mov_b32 s53, 43
            s_mov_b32 s54, 8
            s_cmp_eq_u32 s{sG}, 3
            s_cselect_b32 s52, 8, s52
            s_cselect_b32 s55, 2, 0
        """)
        p.skip_end("L_blk_a", sv)
        p.e(f"""
            v_and_b32 v14, 7, v{lane}
            v_bfe_u32 v15, v{lane}, 3, 1
            v_lshlrev_b32 v13, 4, v13
            v_add_u32 v13, s{sPX}, v13
            v_add_u32 v16, s52, v14
            v_mul_u32_u24 v17, s53, v16
            v_lshrrev_b32 v17, 8, v17
            v_mul_u32_u24 v75, 6, v17
            v_sub_u32 v16, v16, v75
            v_add_u32 v16, s54, v16
            v_lshl_add_u32 v17, v17, 2, v15
            v_add_u32 v17, s55, v17
            v_mul_u32_u24 v17, 43008, v17
            v_mul_u32_u24 v16, 192, v16
            v_add3_u32 v{PX1}, v16, v17, v13
            s_lshl_b32 s48, s{sG}, 1
            v_add_u32 v15, s48, v15
            v_mul_u32_u24 v15, 43008, v15
            v_mul_u32_u24 v14, 192, v14
            v_add3_u32 v{PX0}, v14, v15, v13
            s_cmp_lt_u32 s{sW}, 4
        """)
        sv = p.skip_begin("s_cbranch_scc1 L_px_a")
        p.e(f"""
            v_bfe_u32 v14, v12, 1, 1
            v_add_u32 v14, 10, v14
            v_mul_u32_u24 v14, 43008, v14
            v_and_b32 v15, 1, v12
            v_add_u32 v15, 12, v15
            v_mul_u32_u24 v15, 192, v15
            v_add3_u32 v14, v14, v15, v13
            s_lshl_b32 s48, s{sG}, 6
            v_add_u32 v14, s48, v14
            v_mov_b32 v15, {OOB}
            v_cmp_gt_u32 vcc, 4, v12
            v_cndmask_b32 v{PX0}, v15, v14, vcc
        """)
        p.skip_end("L_px_a", sv)

    def conv(self):
        p = self.p

        def bb(tc, rho):
            return 88 + 32 * (tc & 1) + 8 * rho

        def reads(tc, rho):
            for e in range(2):
                c = 2 * tc + e
                p.e(f"ds_read_b128 {vr(bb(tc, rho) + 4 * e, 4)}, v{66 + (c & 3)} offset:{3072 * rho + 64 * (c >> 2)}")

        for tc in range(2):
            for rho in range(4):
                reads(tc, rho)
        for tc in range(6):
            for k, (row, dy) in enumerate(((0, 0), (1, 0), (0, 1), (1, 1), (0, 2), (1, 2))):
                d = 18 + 24 * row + 4 * tc
                p.e(f"v_smfmac_f32_16x16x64_bf16 {vr(d, 4)}, {ar(4 * (6 * dy + tc), 4)}, {vr(bb(tc, row + dy), 8)}, v70")
                if tc + 2 < 6 and k in (0, 2, 4, 5):
                    reads(tc + 2, {0: 0, 2: 1, 4: 2, 5: 3}[k])

    def layernorm(self):
        p = self.p
        S = (112, 114)
        Q = (116, 118)
        for k in range(12):
            for row in range(2):
                d = 18 + 24 * row + 2 * k
                if k == 1:
                    p.e(f"v_pk_add_f32 {vr(S[row], 2)}, {vr(d - 2, 2)}, {vr(d, 2)}")
                elif k > 1:
                    p.e(f"v_pk_add_f32 {vr(S[row], 2)}, {vr(S[row], 2)}, {vr(d, 2)}")
            for row in range(2):
                d = 18 + 24 * row + 2 * k
                if k == 0:
                    p.e(f"v_pk_mul_f32 {vr(Q[row], 2)}, {vr(d, 2)}, {vr(d, 2)}")
                else:
                    p.e(f"v_pk_fma_f32 {vr(Q[row], 2)}, {vr(d, 2)}, {vr(d, 2)}, {vr(Q[row], 2)}")
        p.e(f"""
            v_add_f32 v112, v112, v113
            v_add_f32 v116, v116, v117
            v_add_f32 v114, v114, v115
            v_add_f32 v118, v118, v119
            s_mov_b32 s48, {f2u(1.0 / 96)}
            v_permlane32_swap_b32 v112, v116
            v_permlane32_swap_b32 v114, v118
            v_mov_b32 v121, {f2u(1e-5)}
            v_add_f32 v112, v112, v116
            v_add_f32 v114, v114, v118
            v_permlane16_swap_b32 v112, v114
            v_add_f32 v112, v112, v114
            v_mov_b32 v113, v112
            v_permlane32_swap_b32 v113, v112
            v_mul_f32 v113, s48, v113
            v_fma_f32 v112, v112, s48, v121
            v_fma_f32 v112, -v113, v113, v112
            v_max_f32 v112, v112, v121
            v_rsq_f32 v112, v112
            v_mul_f32 v123, {f2u(KS)}, v112
            v_mul_f32 v125, v113, v123
            v_mov_b32 v122, v123
            v_mov_b32 v124, v125
            v_permlane16_swap_b32 v122, v123
            v_permlane16_swap_b32 v124, v125
        """)
        for row in range(2):
            for pch in range(3):
                d = 18 + 24 * row + 8 * pch
                for k in range(4):
                    p.e(f"v_pk_fma_f32 {vr(d + 2 * k, 2)}, {vr(d + 2 * k, 2)}, v[122:123], v[124:125] op_sel:[0,{row},{row}] op_sel_hi:[1,{row},{row}] neg_lo:[0,0,1] neg_hi:[0,0,1]")
                o = 88 + 12 * row + 4 * pch
                for k in range(4):
                    p.e(f"v_cvt_pk_bf16_f32 v{o + k}, v{d + 2 * k}, v{d + 2 * k + 1}")
                p.e(f"ds_write_b128 v71, {vr(o, 4)} offset:{2048 * pch + 64 * row}")

    def w1_reads(self, jt):
        p = self.p
        for m in range(6):
            for a in range(2):
                off = (32 * (m >> 1) + 16 * a + 8 * (m & 1)) * 768
                reg = 72 + jt
                if off > 65535:
                    p.e(f"v_add_u32 v75, 6144, v{reg}")
                    reg, off = 75, off - 6144
                p.e(f"ds_read_b64_tr_b16 {ar(24 * jt + 4 * m + 2 * a, 2)}, v{reg} offset:{off}")

    def ln_read(self, tile, m):
        if tile == 0:
            return f"ds_read_b128 {ar(72 + 4 * m, 4)}, v{L16} offset:{1024 * m}"
        return f"ds_read_b128 {ar(72 + 4 * m, 4)}, v{LSP} offset:{6144 * (tile - 1) + 1024 * m}"

    def mfma1(self, d, jt, m):
        c = "0" if m == 0 else vr(d, 16)
        return f"v_mfma_f32_32x32x16_bf16 {vr(d, 16)}, {ar(72 + 4 * m, 4)}, {ar(24 * jt + 4 * m, 4)}, {c}"

    def unit(self, x, jt, first, dests, mf, after_mf, after_cvt, hooks):
        p = self.p
        P = lambda r: vr(r, 2)
        acc = ACC + 2 * jt
        for i in range(7):
            p.e(f"v_pk_fma_f32 {P(T + 2 * i)}, {P(x + 2 * i)}, {P(x + 2 * i)}, s[{sC0}:{sC0 + 1}]")
        for i in range(7):
            p.e(f"v_pk_mul_f32 {P(T + 2 * i)}, {P(x + 2 * i)}, {P(T + 2 * i)} neg_lo:[1,0] neg_hi:[1,0]")
        for half, opn in enumerate(("v_exp_f32", "v_rcp_f32")):
            for i in range(14):
                if mf and i in (0, 3, 6):
                    m = 3 * half + i // 3
                    p.e(mf[m])
                    if after_mf:
                        p.e(after_mf[m])
                if (half, i) in hooks:
                    hooks[(half, i)]()
                p.e(f"{opn} v{T + i}, v{T + i}")
            if half == 0:
                for i in range(7):
                    p.e(f"v_pk_add_f32 {P(T + 2 * i)}, {P(T + 2 * i)}, 1.0 op_sel_hi:[1,0]")
        for i in range(7):
            p.e(f"v_pk_mul_f32 {P(T + 2 * i)}, {P(x + 2 * i)}, {P(T + 2 * i)}")
        for i in range(7):
            if first and i == 0:
                p.e(f"v_pk_mul_f32 {P(acc)}, {P(T)}, {P(T)}")
            else:
                p.e(f"v_pk_fma_f32 {P(acc)}, {P(T + 2 * i)}, {P(T + 2 * i)}, {P(acc)}")
            p.e(f"v_cvt_pk_bf16_f32 v{dests[i]}, v{T + 2 * i}, v{T + 2 * i + 1}")
            if i in after_cvt:
                p.e(after_cvt[i])

    def hwrite(self, n, jt, reg):
        if n <= 4:
            return f"ds_write_b128 v{HW0}, {vr(reg, 4)} offset:{slot(n) + 1024 * jt}"
        return f"ds_write_b128 v{HW1}, {vr(reg, 4)} offset:{slot(n) - 61440 + 1024 * jt}"

    def late_loads(self, role):
        p = self.p
        out = []
        for jt in range(3):
            out.append(f"buffer_load_dwordx2 {vr(GRAW + 2 * jt, 2)}, v{GBV}, {srd(GG)}, s{sHB2} offen offset:{64 * jt}")
            out.append(f"buffer_load_dwordx2 {vr(BRAW + 2 * jt, 2)}, v{GBV}, {srd(BB)}, s{sHB2} offen offset:{64 * jt}")
        for J in range(3):
            for jt in range(3):
                for e in range(4):
                    out.append(f"buffer_load_dword v{W2O + 12 * J + 4 * jt + e}, v{W2V}, {srd(W2)}, s{sJT[jt]} offen offset:{192 * e + 64 * J}")
        for J in range(3):
            out.append(f"buffer_load_dwordx4 {vr(XO + 12 + 4 * J, 4)}, v{PX1}, {srd(XS)}, 0 offen offset:{64 * J}")
            if role == "A":
                out.append(f"buffer_load_dwordx4 {vr(XO + 4 * J, 4)}, v{PX0}, {srd(XS)}, 0 offen offset:{64 * J}")
        if role == "B":
            out.append(f"buffer_load_dwordx4 {vr(XO, 4)}, v{PX0}, {srd(XS)}, 0 offen")
        return out

    def gate_signal(self):
        p = self.p
        p.e(f"s_cmp_lg_u32 s{sW}, 0")
        sv = p.skip_begin("s_cbranch_scc1 L_sig_done")
        p.wait_tag("init")
        p.e(f"s_mov_b32 s{sSPIN}, 0")
        p.raw("L_init_chk:")
        p.e(f"""
            v_readfirstlane_b32 s48, v{TMP}
            s_cmp_ge_u32 s48, {G}
            s_cbranch_scc1 L_init_ok
            s_add_u32 s{sSPIN}, s{sSPIN}, 1
            s_cmp_ge_u32 s{sSPIN}, 20000
            s_cbranch_scc1 L_init_ok
            s_sleep 8
            buffer_load_dword v{TMP}, off, {srd(DBG)}, 0 sc1
        """)
        p.wait(vm=0)
        p.e("s_branch L_init_chk")
        p.raw("L_init_ok:")
        p.e(f"""
            s_lshl_b32 s48, s{sREP}, 7
            s_add_u32 s48, s48, {GATE}
            v_mov_b32 v{TMP}, 1
            s_mov_b64 exec, 1
            buffer_atomic_add v{TMP}, off, {srd(WS)}, s48
            s_mov_b64 exec, -1
        """)
        p.skip_end("L_sig_done", sv)

    def main_loop(self, role):
        p, o = self.p, self.o
        tiles = (0, 2, 4, 6) if role == "A" else (1, 3, 5)
        units = [(s, jt) for s in range(len(tiles)) for jt in range(3)]
        for m in range(6):
            p.e(self.mfma1(D0, 0, m))
        last = len(tiles) - 1
        bar_after = o.get("barA", 2) if role == "A" else o.get("barB", 1)
        prio = o.get("prio" + role, {})
        for u, (s, jt) in enumerate(units):
            if u in prio:
                p.e(f"s_setprio {prio[u]}")
            x = (D0, D1)[u & 1]
            mf = after = None
            if u + 1 < len(units):
                mf = [self.mfma1((D0, D1)[(u + 1) & 1], units[u + 1][1], m) for m in range(6)]
                if jt == 1 and s < last:
                    after = [self.ln_read(tiles[s + 1], m) for m in range(6)]
            dests = [LX + 4 * jt + i for i in range(4)]
            acv = {}
            nearly = 2 if role == "A" else 1
            for k in range(3):
                n = 3 * s + k
                b = n >> 2
                if role == "B" and n == 8:
                    dests.append(TMP)
                    acv[6] = f"ds_write_b32 v{HS}, v{TMP} offset:{256 * jt}"
                elif b < nearly:
                    base = W2O + 12 * b + 4 * jt
                    dests.append(base + (n & 3))
                    if (n & 3) == 3:
                        acv[4 + k] = self.hwrite((6 + b) if role == "A" else 8, jt, base)
                else:
                    dests.append(LY + 4 * jt + (n & 3))
            if tiles[s] != 6:
                acv[3] = self.hwrite(tiles[s], jt, LX + 4 * jt)
            hooks = {}
            if s == last:
                loads = self.late_loads(role)
                if jt == 0:
                    def h0(loads=loads):
                        p.wait(lgkm=0)
                        if role == "A":
                            p.e(f"buffer_load_dword v{TMP}, off, {srd(DBG)}, 0 sc1", tag="init")
                        for ins in loads[:8]:
                            p.e(ins)
                    hooks[(0, 8)] = h0
                    hooks[(1, 8)] = lambda loads=loads: [p.e(i) for i in loads[8:18]]
                elif jt == 1:
                    hooks[(0, 8)] = lambda loads=loads: [p.e(i) for i in loads[18:28]]
                    hooks[(1, 8)] = lambda loads=loads: [p.e(i) for i in loads[28:38]]
                else:
                    def h2(loads=loads):
                        if role == "A":
                            self.gate_signal()
                        for ins in loads[38:]:
                            p.e(ins)
                    hooks[o.get("gate_at", (0, 0))] = h2
            self.unit(x, jt, s == 0, dests, mf, after, acv, hooks)
            if u == bar_after:
                p.barrier()

    def h_reads(self, areg, small):
        p = self.p
        for ks in range(12):
            for a in range(2):
                hid0 = 96 * (ks & 3) + 32 * (ks >> 2) + 16 * a
                p.e(f"ds_read_b64_tr_b16 {ar(areg + 4 * ks + 2 * a, 2)}, v4 offset:{hid0 * (8 if small else 32)}")

    def shadow(self, role):
        p, o = self.p, self.o
        for jt in range(3):
            p.e(f"v_add_f32 v{ACC + 2 * jt}, v{ACC + 2 * jt}, v{ACC + 2 * jt + 1}")
        for jt in range(3):
            p.e(f"ds_add_f32 v{SUMA}, v{ACC + 2 * jt} offset:{4 * jt}")
        p.e(f"""
            s_lshl_b32 s48, s{sW}, 8
            s_add_u32 s49, s48, {SUMS}
            v_add_u32 v16, s49, v{L4}
            s_lshl_b32 s49, s{sREP}, 11
            s_add_u32 s49, s49, s48
            v_add_u32 v{HW0}, {SP}, v{HW0}
            s_mov_b32 s50, 0x88888888
            s_mov_b32 s51, 0x88888888
        """)
        p.barrier()
        self.stamp(5)
        p.e("ds_read_b32 v16, v16")
        late = [(LX, 0), (LY, 1)] if role == "A" else [(LY, 2)]
        for reg, L in late:
            for jt in range(3):
                p.e(f"ds_write_b128 v{HW0}, {vr(reg + 4 * jt, 4)} offset:{12288 * L + 1024 * jt}")
        p.e(f"""
            v_cndmask_b32 v16, v16, 1.0, s[50:51]
            buffer_atomic_add_f32 v16, v{L4}, {srd(WS)}, s49 offen
            v_and_b32 v7, 0xf0, v{L16}
            v_lshlrev_b32 v3, 3, v7
            v_add_u32 v3, {GATE}, v3
            buffer_load_dword v86, v3, {srd(WS)}, 0 offen sc1
        """, tag="gate")
        p.e(f"""
            v_lshrrev_b32 v6, 8, v{L16}
            v_lshl_add_u32 v5, v6, 11, v7
            v_add_u32 v5, s48, v5
            v_lshrrev_b32 v8, 6, v{L16}
            v_bfe_u32 v9, v{L16}, 4, 2
            v_and_b32 v10, 1, v6
            v_lshlrev_b32 v10, 1, v10
            v_xor_b32 v9, v9, v10
            v_lshlrev_b32 v9, 3, v9
            v_lshl_add_u32 v87, v8, 5, v9
        """)
        if role == "A":
            p.e(f"v_add_u32 v4, s{sB0}, v87")
            self.h_reads(0, False)
        else:
            p.e(f"v_lshlrev_b32 v4, 3, v8\nv_add_u32 v4, {SMALL}, v4")
            self.h_reads(0, True)
        for n in range(36):
            p.e(f"v_lshlrev_b32 v{W2E + n}, 16, v{W2O + n}\nv_and_b32 v{W2O + n}, s{sMASK}, v{W2O + n}")
        bacc = [54, 56, 58, 60, 62, 16]
        for jt in range(3):
            for h in range(2):
                p.e(f"v_lshlrev_b32 v{8 + 2 * h}, 16, v{BRAW + 2 * jt + h}\nv_and_b32 v{9 + 2 * h}, s{sMASK}, v{BRAW + 2 * jt + h}")
            for h in range(2):
                for b6 in range(6):
                    w = (W2E, W2O)[b6 & 1] + 12 * (b6 >> 1) + 4 * jt + 2 * h
                    if jt == 0 and h == 0:
                        p.e(f"v_pk_mul_f32 {vr(bacc[b6], 2)}, {vr(w, 2)}, {vr(8 + 2 * h, 2)}")
                    else:
                        p.e(f"v_pk_fma_f32 {vr(bacc[b6], 2)}, {vr(w, 2)}, {vr(8 + 2 * h, 2)}, {vr(bacc[b6], 2)}")
        p.e(f"v_lshrrev_b32 v8, 2, v7\nv_add_u32 v8, {BIAS}, v8")
        for b6 in range(6):
            p.e(f"v_add_f32 v{bacc[b6]}, v{bacc[b6]}, v{bacc[b6] + 1}")
        for b6 in range(6):
            p.e(f"ds_add_f32 v8, v{bacc[b6]} offset:{64 * b6}")
        for jt in range(3):
            for h in range(2):
                p.e(f"v_lshlrev_b32 v{SREG[jt] + 2 * h}, 16, v{GRAW + 2 * jt + h}\nv_and_b32 v{SREG[jt] + 2 * h + 1}, s{sMASK}, v{GRAW + 2 * jt + h}")
        for jt in range(3):
            for h in range(2):
                p.e(f"v_pk_mul_f32 {vr(SREG[jt] + 2 * h, 2)}, {vr(SREG[jt] + 2 * h, 2)}, s[{sKI}:{sKI + 1}]")
        p.wait(vm=0)
        p.e(f"s_mov_b32 s{sSPIN}, 0")
        p.raw(f"L_gate_{role}:")
        p.e(f"""
            v_cmp_gt_u32 vcc, 16, v86
            s_cbranch_vccz L_gate_ok_{role}
            s_add_u32 s{sSPIN}, s{sSPIN}, 1
            s_cmp_ge_u32 s{sSPIN}, 20000
            s_cbranch_scc1 L_gate_ok_{role}
            s_sleep {o.get('gate_sleep', 8)}
            buffer_load_dword v86, v3, {srd(WS)}, 0 offen sc1
        """)
        p.wait(vm=0)
        p.e(f"s_branch L_gate_{role}")
        p.raw(f"L_gate_ok_{role}:")
        self.stamp(6)
        gx = [148, 152, 156, 8]
        p.e("s_mov_b32 s52, 8192\ns_mov_b32 s53, 16384\ns_mov_b32 s54, 24576")
        gl = [f"buffer_load_dwordx4 {vr(gx[n], 4)}, v5, {srd(WS)}, {('0', 's52', 's53', 's54')[n]} offen sc1" for n in range(4)]
        for ins in gl:
            p.e(ins)
        p.barrier()
        p.e(f"v_add_u32 v4, s{sB1}, v87")
        self.h_reads(48, False)
        p.e(f"v_lshlrev_b32 v17, 4, v6\nv_add_u32 v17, {BIAS}, v17")
        ct = (XE + 8, XE + 20) if role == "A" else (XE + 4, XE + 8)
        for J in range(2 if role == "A" else 3):
            for par in range(2):
                p.e(f"ds_read_b128 {vr(ct[par], 4)}, v17 offset:{64 * (2 * J + par)}")
            for blk in ((0, 1) if role == "A" else (1,)):
                self.x_init(blk, J, ct)
        if role == "B":
            p.e(f"s_lshl_b32 s48, s{sG}, 7\nv_add_u32 v16, s48, v17")
            for par in range(2):
                p.e(f"ds_read_b128 {vr(ct[par], 4)}, v16 offset:{64 * par}")
            self.x_init(0, 0, ct)
        p.e(f"""
            s_mul_i32 s48, s{sW}, 192
            s_add_u32 s48, s48, {GX}
            v_lshlrev_b32 v87, 4, v6
            v_add_u32 v87, s48, v87
            v_and_b32 v16, 1, v6
            v_lshlrev_b32 v16, 1, v16
            v_lshrrev_b32 v6, 1, v6
            v_max_u32 v6, v6, v16
            v_lshlrev_b32 v6, 6, v6
            v_lshrrev_b32 v16, 2, v7
            v_add3_u32 v6, v6, v16, s48
            s_lshr_b32 s48, s{sW}, 1
            s_lshl_b32 s48, s48, 10
            s_and_b32 s49, s{sW}, 1
            s_lshl_b32 s49, s49, 3
            s_add_u32 s48, s48, s49
            v_add_u32 v4, s48, v{L16}
            v_add_u32 v7, 49152, v{L16}
            v_mov_b32 v86, {MEAN}
            s_mov_b32 s{sSPIN}, 0
            s_mov_b32 s55, {f2u(16.0)}
            s_mov_b32 s56, {f2u(1.0 / (KS * KS))}
            v_mov_b32 v16, {f2u(1e-6)}
        """)
        p.wait(vm=0, lgkm=0)
        p.raw(f"L_val_{role}:")
        p.e(f"""
            v_min_f32 v3, v{gx[0] + 3}, v{gx[1] + 3}
            v_min3_f32 v3, v3, v{gx[2] + 3}, v{gx[3] + 3}
            v_cmp_gt_f32 vcc, s55, v3
            s_cbranch_vccz L_val_ok_{role}
            s_add_u32 s{sSPIN}, s{sSPIN}, 1
            s_cmp_ge_u32 s{sSPIN}, 20000
            s_cbranch_scc1 L_val_ok_{role}
            s_sleep 4
        """)
        for ins in gl:
            p.e(ins)
        p.wait(vm=0)
        p.e(f"s_branch L_val_{role}")
        p.raw(f"L_val_ok_{role}:")
        self.stamp(7)
        p.e(f"""
            v_pk_add_f32 v[148:149], v[148:149], v[152:153]
            v_pk_add_f32 v[156:157], v[156:157], v[8:9]
            v_add_f32 v150, v150, v154
            v_add_f32 v158, v158, v10
            v_pk_add_f32 v[148:149], v[148:149], v[156:157]
            v_add_f32 v150, v150, v158
            v_mov_b32 v151, v150
            v_permlane32_swap_b32 v148, v149
            v_permlane32_swap_b32 v151, v150
            v_add_f32 v148, v148, v149
            v_add_f32 v150, v150, v151
            v_permlane16_swap_b32 v148, v150
            v_add_f32 v148, v148, v150
            v_fma_f32 v148, v148, s56, v16
            v_sqrt_f32 v148, v148
            s_mov_b32 s50, 0
            s_mov_b32 s51, 0xffff0000
            ds_write_b32 v6, v148
            v_cndmask_b32 v149, v148, 0, s[50:51]
        """)
        for ctl in ("row_shr:1 bound_ctrl:0", "row_shr:2 bound_ctrl:0", "row_shr:4 bound_ctrl:0", "row_shr:8 bound_ctrl:0", "row_bcast:15 row_mask:0xa", "row_bcast:31 row_mask:0xc"):
            p.e(f"v_add_f32_dpp v149, v149, v149 {ctl}")
        p.e("""
            s_mov_b32 exec_lo, 0
            s_mov_b32 exec_hi, 0x80000000
            ds_add_f32 v86, v149
            s_mov_b64 exec, -1
        """)
        p.barrier()
        p.e("ds_read_b32 v8, v86")
        for jt in range(3):
            p.e(f"ds_read_b128 {vr(148 + 4 * jt, 4)}, v87 offset:{64 * jt}")
        p.e(f"s_mov_b32 s48, {f2u(1.0 / 384)}\nv_fma_f32 v8, v8, s48, v16\nv_rcp_f32 v8, v8")
        for jt in range(3):
            for h in range(2):
                r = SREG[jt] + 2 * h
                p.e(f"v_pk_mul_f32 {vr(r, 2)}, {vr(r, 2)}, {vr(148 + 4 * jt + 2 * h, 2)}")
        for jt in range(3):
            for h in range(2):
                r = SREG[jt] + 2 * h
                p.e(f"v_pk_fma_f32 {vr(r, 2)}, {vr(r, 2)}, v[8:9], s[{sKI}:{sKI + 1}] op_sel_hi:[1,0,1]")
        for ins in self.scale_ops(0, True):
            p.e(ins)
        p.barrier()
        self.stamp(8)

    def x_init(self, blk, J, ct):
        p = self.p
        e, od = XE + 12 * blk + 4 * J, XO + 12 * blk + 4 * J
        for r in range(4):
            p.e(f"v_dot2_f32_bf16 v{e + r}, v{od + r}, s{sONE_LO}, v{ct[0] + r}")
        for r in range(4):
            p.e(f"v_dot2_f32_bf16 v{od + r}, v{od + r}, s{sONE_HI}, v{ct[1] + r}")

    def scale_ops(self, J, packed):
        out = []
        k = 0
        for jt in range(3):
            for par in range(2):
                w = (W2E, W2O)[par] + 12 * J + 4 * jt
                if packed:
                    out.append(f"v_pk_mul_f32 {vr(w, 2)}, {vr(w, 2)}, {vr(SREG[jt], 2)}")
                    out.append(f"v_pk_mul_f32 {vr(w + 2, 2)}, {vr(w + 2, 2)}, {vr(SREG[jt] + 2, 2)}")
                else:
                    for e in range(4):
                        out.append(f"v_mul_f32 v{w + e}, v{w + e}, v{SREG[jt] + e}")
                out.append(f"v_cvt_pk_bf16_f32 v{w}, v{w}, v{w + 1}")
                out.append(f"v_cvt_pk_bf16_f32 v{w + 1}, v{w + 2}, v{w + 3}")
                off = ((2 * J + par) * 12 + 4 * jt) * 1024
                if J == 2:
                    out.append(f"ds_write_b64 v5, {vr(w, 2)} offset:{off - 49152}")
                else:
                    out.append(f"ds_write_b64 v4, {vr(w, 2)} offset:{off}")
                k += 1
        return out

    def gemm2(self, role):
        p, o = self.p, self.o
        pol = o.get("opol", "")
        p.e(f"s_setprio {o.get('prio2' + role, 1 if role == 'B' else 0)}")
        fb = lambda ks, par: (W2E, W2O)[par] + 4 * (ks % 3)

        def frag_read(J, ks):
            r = []
            for par in range(2):
                off = ((2 * J + par) * 12 + ks) * 1024
                if J == 2:
                    r.append(f"ds_read_b128 {vr(fb(ks, par), 4)}, v7 offset:{off - 49152}")
                else:
                    r.append(f"ds_read_b128 {vr(fb(ks, par), 4)}, v{L16} offset:{off}")
            return r

        def epilogue(blk, J, px, off):
            e, od = XE + 12 * blk + 4 * J, XO + 12 * blk + 4 * J
            r = [f"v_cvt_pk_bf16_f32 v{e + i}, v{e + i}, v{od + i}" for i in range(4)]
            r.append(f"buffer_store_dwordx4 {vr(e, 4)}, v{px}, {srd(OUT)}, 0 offen offset:{off} {pol}")
            return r

        blks = (0, 1) if role == "A" else (1,)
        steps = [(J, ks) for J in range(3) for ks in range(12)]
        barks = o.get("barks", 9)
        p.e("v_add_u32 v5, 49152, v4")
        for ins in frag_read(0, 0) + frag_read(0, 1):
            p.e(ins)
        fill = []
        for i, (J, ks) in enumerate(steps):
            if ks == 0:
                fill = []
                if J > 0:
                    for blk in blks:
                        fill += epilogue(blk, J - 1, (PX0, PX1)[blk], 64 * (J - 1))
                if J < 2:
                    fill += self.scale_ops(J + 1, False)
                if J == 0 and role == "A":
                    fill += [f"ds_read_b128 v[148:151], v17 offset:256", f"ds_read_b128 v[152:155], v17 offset:320"]
                    for blk in blks:
                        e, od = XE + 12 * blk + 8, XO + 12 * blk + 8
                        for r in range(4):
                            fill += [f"v_lshlrev_b32 v{e + r}, 16, v{od + r}", f"v_and_b32 v{od + r}, s{sMASK}, v{od + r}"]
                        for r in range(4):
                            fill += [f"v_add_f32 v{e + r}, v{e + r}, v{148 + r}", f"v_add_f32 v{od + r}, v{od + r}, v{152 + r}"]
                nsc = len(fill)
                gaps = (barks if J < 2 else 8) * 2 * len(blks)
                per = -(-nsc // gaps)
            mf = []
            for par in range(2):
                for blk in blks:
                    d = (XE, XO)[par] + 12 * blk + 4 * J
                    mf.append(f"v_mfma_f32_16x16x32_bf16 {vr(d, 4)}, {vr(fb(ks, par), 4)}, {ar(48 * blk + 4 * ks, 4)}, {vr(d, 4)}")
            if ks == barks and J < 2:
                for ins in fill:
                    p.e(ins)
                fill = []
                p.barrier()
            for k, ins in enumerate(mf):
                p.e(ins)
                if k == 0 and i + 2 < len(steps):
                    for rd in frag_read(*steps[i + 2]):
                        p.e(rd)
                if not (ks == 0 and k < len(mf) - 1 and J > 0):
                    for _ in range(per):
                        if fill:
                            p.e(fill.pop(0))
        for ins in fill:
            p.e(ins)
        self.stamp(9)
        if role == "B":
            p.e(f"s_mul_i32 s48, s{sG}, 24576\nv_add_u32 v7, s48, v{L16}")
        tail = []
        for blk in blks:
            tail += epilogue(blk, 2, (PX0, PX1)[blk], 128)
        if role == "A":
            for ins in tail:
                p.e(ins)
            return
        p.e(f"s_cmp_eq_u32 s{sG}, 3")
        snap = p.snapshot()
        p.e("s_cbranch_scc1 L_tail_b3")
        rd = lambda ks: [f"ds_read_b128 {vr(fb(ks, par), 4)}, v7 offset:{(12 * par + ks) * 1024}" for par in range(2)]
        for ks in range(3):
            for ins in rd(ks):
                p.e(ins)
        for ins in tail:
            p.e(ins)
        for ks in range(12):
            for par in range(2):
                d = (XE, XO)[par]
                p.e(f"v_mfma_f32_16x16x32_bf16 {vr(d, 4)}, {vr(fb(ks, par), 4)}, {ar(4 * ks, 4)}, {vr(d, 4)}")
            if ks + 3 < 12:
                for ins in rd(ks + 3):
                    p.e(ins)
        for ins in epilogue(0, 0, PX0, 0):
            p.e(ins)
        p.e("s_branch L_done")
        p.restore(snap)
        p.raw("L_tail_b3:")
        for ins in tail:
            p.e(ins)

    def ws_init(self):
        p = self.p
        p.e(f"s_cmp_ge_u32 s2, {G}")
        sv = p.skip_begin("s_cbranch_scc1 L_noinit")
        p.e(f"""
            s_lshl_b32 s48, s2, 11
            s_lshl_b32 s49, s2, 7
            s_add_u32 s49, s49, {GATE}
            buffer_store_dwordx4 v[84:87], v{L16}, {srd(WS)}, s48 offen sc1
            buffer_store_dwordx4 v[84:87], v{L16}, {srd(WS)}, s48 offen offset:1024 sc1
            s_mov_b64 exec, 1
            buffer_store_dword v84, off, {srd(WS)}, s49 sc1
        """)
        p.wait(vm=0)
        p.e(f"""
            v_mov_b32 v84, 1
            buffer_atomic_add v84, off, {srd(DBG)}, 0
            s_mov_b64 exec, -1
        """)
        p.skip_end("L_noinit", sv)

    def finish(self):
        p = self.p
        if self.o.get("stamps"):
            p.raw("L_done:")
            p.restore(([], 0, [], [], False))
            self.stamp(10)
            p.e("s_waitcnt vmcnt(0)\ns_memtime s[100:101]\ns_waitcnt lgkmcnt(0)")
            p.e(f"s_lshl_b32 s48, s2, 9\ns_lshl_b32 s49, s{sW}, 6\ns_add_u32 s48, s48, s49\ns_add_u32 s48, s48, 0x100000\ns_mov_b64 exec, 1")
            for i in range(1, 11):
                p.e(f"s_sub_u32 s49, s{sSTAMP + 2 * i}, s{sSTAMP}\nv_mov_b32 v4, s49\nbuffer_store_dword v4, off, {srd(WS)}, s48 offset:{4 * i}")
            p.e(f"s_sub_u32 s49, s100, s{sSTAMP}\nv_mov_b32 v4, s49\nbuffer_store_dword v4, off, {srd(WS)}, s48 offset:44")
            p.e(f"v_mov_b32 v4, s98\nbuffer_store_dword v4, off, {srd(WS)}, s48")
            p.e(f"s_memrealtime s[98:99]\ns_waitcnt lgkmcnt(0)\nv_mov_b32 v4, s98\nbuffer_store_dword v4, off, {srd(WS)}, s48 offset:48")
        else:
            p.raw("L_done:")
        p.raw("L_exit:")

    def build(self):
        p, o = self.p, self.o
        self.prologue()
        p.e(f"s_cmp_ge_u32 s{sW}, 4")
        snap = p.snapshot()
        p.e("s_cbranch_scc1 L_role_b")
        if "prio_convA" in o:
            p.e(f"s_setprio {o['prio_convA']}")
        self.conv()
        self.layernorm()
        p.barrier(vm=0)
        self.stamp(3)
        self.w1_reads(0)
        for m in range(6):
            p.e(self.ln_read(0, m))
        self.w1_reads(1)
        self.w1_reads(2)
        self.main_loop("A")
        self.stamp(4)
        self.shadow("A")
        self.gemm2("A")
        p.e("s_branch L_done")
        p.restore(snap)
        p.raw("L_role_b:")
        p.e(f"s_cmp_eq_u32 s{sW}, 7")
        snap7 = p.snapshot()
        p.e("s_cbranch_scc1 L_wave7")
        self.conv()
        p.barrier(vm=0)
        self.stamp(3)
        self.w1_reads(0)
        for m in range(6):
            p.e(self.ln_read(1, m))
        self.w1_reads(1)
        self.w1_reads(2)
        self.layernorm()
        p.wait(lgkm=0)
        p.e("s_branch L_b_main")
        p.restore(snap7)
        p.raw("L_wave7:")
        self.ws_init()
        p.barrier(vm=0)
        self.stamp(3)
        self.w1_reads(0)
        for m in range(6):
            p.e(self.ln_read(1, m))
        self.w1_reads(1)
        self.w1_reads(2)
        p.wait(lgkm=0)
        p.raw("L_b_main:")
        p.e("s_nop 1")
        self.main_loop("B")
        self.stamp(4)
        self.shadow("B")
        self.gemm2("B")
        self.finish()
        return self.wrap(p.text())

    def wrap(self, body):
        ref = open("standalone__modern_conv_block_slak__vision.s.ref").read().split("\n")
        head = [l for l in ref if l.startswith(";") and "@launch" not in l]
        return "\n".join(head) + f"""
; @launch grid=(256,1,1) block=(512,1,1) lds={LDS_BYTES}
; One workgroup per CU owns a 14x14 pixel tile; the activations stay on chip across the grid-wide GRN reduction.
.amdgcn_target "amdgcn-amd-amdhsa--gfx950"
.text
.globl {KNAME}
.p2align 8
.type {KNAME},@function
{KNAME}:
{body}    s_endpgm
.section .rodata,"a"
.p2align 6
.amdhsa_kernel {KNAME}
  .amdhsa_next_free_vgpr 256
  .amdhsa_next_free_sgpr 102
  .amdhsa_accum_offset 160
  .amdhsa_group_segment_fixed_size 0
  .amdhsa_float_denorm_mode_32 3
  .amdhsa_kernarg_size 72
  .amdhsa_user_sgpr_count 2
  .amdhsa_user_sgpr_kernarg_segment_ptr 1
  .amdhsa_system_sgpr_workgroup_id_x 1
.end_amdhsa_kernel
"""


def generate(**opt):
    g = Gen(opt)
    txt = g.build()
    return txt, g.p.nops


if __name__ == "__main__":
    out = sys.argv[1]
    opt = eval("dict(" + (sys.argv[2] if len(sys.argv) > 2 else "") + ")")
    txt, nops = generate(**opt)
    open(out, "w").write(txt)
    print(f"wrote {out}: {txt.count(chr(10))} lines, padded wait states {nops}")
```
